```python
import torch

def _softmax(x, axis=-1):
    return torch.softmax(x, dim=axis)
def _gelu(x):
    return torch.nn.functional.gelu(x, approximate="tanh")
def _silu(x):
    return torch.nn.functional.silu(x)
def _sigmoid(x):
    return torch.sigmoid(x)
def _layernorm(x, axis=-1, eps=1e-5):
    m = x.mean(dim=axis, keepdim=True)
    v = x.var(dim=axis, keepdim=True, unbiased=False)
    return (x - m) / torch.sqrt(v + eps)
def _scatter_add(tgt, idx, src, axis=0):
    return tgt.clone().index_add_(axis, idx, src)
def _segment_sum(src, seg, n):
    out = torch.zeros((n,) + src.shape[1:], dtype=src.dtype)
    return out.index_add_(0, seg, src)
def _pad(x, pw):
    flat = tuple(v for pair in reversed(pw) for v in pair)
    return torch.nn.functional.pad(x, flat)

kernel_name = 'gated_mix__linear_attn_block__sliding_local_dilated__prompt'

def setup_inputs():

    _w = (lambda a: (lambda t: t.to(torch.bfloat16) if t.is_floating_point() else t)(torch.as_tensor(a)))
    def _A_setup():
        B, S, D = 1, 2048, 640
        return {
            "x": _w((lambda *s: torch.randn(*s, dtype=torch.bfloat16) * 0.05)(B, S, D)),
            "wqkv": _w((lambda *s: torch.randn(*s, dtype=torch.bfloat16) * 1.6)(D, 3 * D)),
            "wo": _w((lambda *s: torch.randn(*s, dtype=torch.bfloat16) * 0.8)(D, D)),
        }
    _A_in = _A_setup()

    def _B_setup():
        B, S, D = 1, 2048, 640
        return {
            "x": _w((lambda *s: torch.randn(*s, dtype=torch.bfloat16) * 0.05)(B, S, D)),
            "wqkv": _w((lambda *s: torch.randn(*s, dtype=torch.bfloat16) * 0.8)(D, 3 * D)),
            "wo": _w((lambda *s: torch.randn(*s, dtype=torch.bfloat16) * 0.05)(D, D)),
        }
    _B_in = _B_setup()

    return {
        "A_x": _A_in["x"],
        "A_wqkv": _A_in["wqkv"],
        "A_wo": _A_in["wo"],
        "B_x": _B_in["x"],
        "B_wqkv": _B_in["wqkv"],
        "B_wo": _B_in["wo"],
        "gate_w": _w((lambda *s: torch.randn(*s, dtype=torch.bfloat16) * 0.05)(640) * 16.0),
    }

def reference(A_x, A_wqkv, A_wo, B_x, B_wqkv, B_wo, gate_w):
    def _A_ref(x, wqkv, wo):
        B, S, D = x.shape
        H = 32; Dh = D // H
        qkv = (lambda x, *d: x.permute(*d))((x @ wqkv).reshape(B, S, 3, H, Dh), 2, 0, 3, 1, 4)
        q, k, v = qkv[0], qkv[1], qkv[2]
        phi = lambda t: torch.where(t > 0, t + 1, torch.exp(t)) + 1e-6
        pq, pk = phi(q), phi(k)
        kv = torch.einsum("bhsd,bhse->bhde", pk, v)
        z = torch.einsum("bhsd->bhd", pk)
        num = torch.einsum("bhqd,bhde->bhqe", pq, kv)
        den = torch.einsum("bhqd,bhd->bhq", pq, z)[..., None] + 1e-6
        o = num / den
        return (lambda x, *d: x.permute(*d))(o, 0, 2, 1, 3).reshape(B, S, D) @ wo

    def _B_ref(x, wqkv, wo):
        B, S, D = x.shape
        H = 32; Dh = D // H
        W, dil = 8, 2
        qkv = (lambda x, *d: x.permute(*d))((x @ wqkv).reshape(B, S, 3, H, Dh), 2, 0, 3, 1, 4)
        q, k, v = qkv[0], qkv[1], qkv[2]
        scale = Dh ** -0.5
        pos = torch.arange(S)
        off = torch.arange(W) * dil
        idx = pos[:, None] - off[None, :]
        mask = idx >= 0
        idx_c = torch.where(mask, idx, 0).reshape(-1)
        kg = k[:, :, idx_c, :].reshape(B, H, S, W, Dh)
        vg = v[:, :, idx_c, :].reshape(B, H, S, W, Dh)
        logits = torch.einsum("bhsd,bhswd->bhsw", q, kg) * scale
        logits = torch.where(mask[None, None, :, :], logits, -1e9)
        attn = _softmax(logits, axis=-1)
        o = torch.einsum("bhsw,bhswd->bhsd", attn, vg)
        return (lambda x, *d: x.permute(*d))(o, 0, 2, 1, 3).reshape(B, S, D) @ wo

    x = A_x
    g = _sigmoid((x * gate_w).sum(-1, keepdims=True))
    a = _A_ref(x, A_wqkv, A_wo)
    b = _B_ref(x, B_wqkv, B_wo)
    return g * a + (1 - g) * b
```

```python
import re

class R:
    __slots__ = ("k", "i", "n")
    def __init__(self, k, i, n=1):
        self.k = k; self.i = i; self.n = n
        assert i >= 0 and n >= 1
        if k in "va": assert i + n <= 256, (k, i, n)
        if k == "s": assert i + n <= 104, (k, i, n)
    def __str__(self):
        if self.n == 1: return f"{self.k}{self.i}"
        return f"{self.k}[{self.i}:{self.i + self.n - 1}]"
    __repr__ = __str__
    def __getitem__(self, x):
        if isinstance(x, slice):
            a = x.start or 0; b = x.stop if x.stop is not None else self.n
            assert 0 <= a < b <= self.n, (self, x)
            return R(self.k, self.i + a, b - a)
        assert 0 <= x < self.n, (self, x)
        return R(self.k, self.i + x, 1)
    def sub(self, a, n): return self[a:a + n]
    def regs(self): return [(self.k, self.i + j) for j in range(self.n)]

def v(i, n=1): return R("v", i, n)
def a(i, n=1): return R("a", i, n)
def s(i, n=1): return R("s", i, n)
VCC = "vcc"; EXEC = "exec"; M0 = "m0"; SCC = "scc"

def special_regs(x):
    if x == "vcc": return [("x", "vcc")]
    if x == "exec": return [("x", "exec")]
    if x == "m0": return [("x", "m0")]
    if x in ("vcc_lo", "vcc_hi"): return [("x", "vcc")]
    if x in ("exec_lo", "exec_hi"): return [("x", "exec")]
    return []

def regs_of(x):
    if isinstance(x, R): return x.regs()
    if isinstance(x, str): return special_regs(x)
    return []

TRANS = ("v_exp_f32", "v_log_f32", "v_rcp_f32", "v_rsq_f32", "v_sqrt_f32", "v_sin_f32", "v_cos_f32", "v_rcp_iflag_f32")

def mfma_passes(op):
    if "4x4x4" in op: return 2
    if "16x16x32" in op or "16x16x16" in op: return 4
    if "32x32x16" in op or "32x32x8" in op: return 8
    raise ValueError(op)

class Ins:
    __slots__ = ("op", "ops", "mods", "cls", "rd", "wr", "text", "ws", "srcA", "srcB", "srcC", "dpp", "comment", "wide_store", "lds_dma", "sdwa")
    def __init__(self): pass

def fmt_operand(x):
    if isinstance(x, R): return str(x)
    if isinstance(x, float):
        return repr_float(x)
    if isinstance(x, int):
        if -16 <= x <= 64: return str(x)
        return hex(x & 0xFFFFFFFF)
    return str(x)

import struct
def f32bits(f): return struct.unpack("<I", struct.pack("<f", f))[0]
def repr_float(f):
    if f in (0.5, 1.0, 2.0, 4.0, -0.5, -1.0, -2.0, -4.0): return repr(f)
    if f == 0.0: return "0"
    return hex(f32bits(f))

class Prog:
    def __init__(self):
        self.ins = []
        self.vm_q = []
        self.lgkm_q = []
        self.vm_seq = 0; self.lgkm_seq = 0
        self.vm_done = 0; self.lgkm_done = 0
        self.pend = {}
        self.smem_out = False
        self.auto_wait = True

    def raw(self, text): self.ins.append(text)
    def comment(self, text): self.ins.append("; " + text)
    def label(self, name):
        self.ins.append(name + ":")
    def _emit_wait(self, vm=None, lgkm=None):
        parts = []
        if vm is not None:
            vm = min(vm, 63); parts.append(f"vmcnt({vm})")
            self.vm_done = max(self.vm_done, self.vm_seq - vm)
        if lgkm is not None:
            lgkm = min(lgkm, 15); parts.append(f"lgkmcnt({lgkm})")
            self.lgkm_done = max(self.lgkm_done, self.lgkm_seq - lgkm)
            if lgkm == 0: self.smem_out = False
        i = Ins(); i.op = "s_waitcnt"; i.ops = []; i.mods = ""; i.cls = "waitcnt"; i.rd = []; i.wr = []
        i.text = "s_waitcnt " + " ".join(parts); i.ws = 1; i.dpp = False; i.wide_store = False; i.lds_dma = False; i.sdwa = False
        self.ins.append(i)
    def wait_vm(self, ticket):
        if ticket is None or ticket <= self.vm_done: return
        self._emit_wait(vm=self.vm_seq - ticket)
    def wait_lgkm(self, ticket):
        if ticket is None or ticket <= self.lgkm_done: return
        if self.smem_out: self._emit_wait(lgkm=0)
        else: self._emit_wait(lgkm=self.lgkm_seq - ticket)
    def wait(self, vm=None, lgkm=None):
        self._emit_wait(vm, lgkm)
    def wait_all(self):
        if self.vm_done < self.vm_seq or self.lgkm_done < self.lgkm_seq:
            self._emit_wait(0 if self.vm_done < self.vm_seq else None, 0 if self.lgkm_done < self.lgkm_seq else None)
    def reset_counters_unknown(self):
        self.pend = {}
        self.vm_done = self.vm_seq; self.lgkm_done = self.lgkm_seq

    def _auto(self, regs):
        need_vm = 0; need_lg = 0
        for r in regs:
            p = self.pend.get(r)
            if p is None: continue
            if p[0] == "vm":
                if p[1] > self.vm_done: need_vm = max(need_vm, p[1])
            else:
                if p[1] > self.lgkm_done: need_lg = max(need_lg, p[1])
        vm = None; lg = None
        if need_vm: vm = self.vm_seq - need_vm
        if need_lg: lg = 0 if self.smem_out else self.lgkm_seq - need_lg
        if vm is not None or lg is not None: self._emit_wait(vm, lg)

    def I(self, op, *ops, mods="", comment=None):
        i = Ins(); i.op = op; i.ops = ops; i.mods = mods; i.comment = comment
        i.ws = 1; i.dpp = False; i.wide_store = False; i.lds_dma = False; i.srcA = i.srcB = i.srcC = None
        i.sdwa = False
        rd = []; wr = []
        O = [regs_of(x) for x in ops]
        allr = [r for o in O for r in o]
        if op.startswith("v_mfma"):
            i.cls = "mfma"; wr = O[0]; i.srcA = O[1]; i.srcB = O[2]; i.srcC = O[3]; rd = O[1] + O[2] + O[3]
        elif op.startswith("buffer_load") or op.startswith("global_load"):
            i.cls = "vmem"
            if " lds" in (" " + mods) or op.startswith("global_load_lds"):
                i.lds_dma = True; rd = allr + [("x", "m0")]
            else:
                wr = O[0]; rd = [r for o in O[1:] for r in o]
        elif op.startswith("buffer_store") or op.startswith("global_store"):
            i.cls = "vmem"; rd = allr
            if "x3" in op or "x4" in op: i.wide_store = True
        elif op.startswith("buffer_atomic") or op.startswith("global_atomic"):
            i.cls = "vmem"; rd = allr
            if "sc0" in mods.split():
                wr = O[0]
        elif op.startswith("buffer_inv") or op.startswith("buffer_wbl2"):
            i.cls = "vmem"
        elif op.startswith("ds_read") or op.startswith("ds_bpermute") or op.startswith("ds_permute") or op.startswith("ds_swizzle"):
            i.cls = "ds"; wr = O[0]; rd = [r for o in O[1:] for r in o]
        elif op.startswith("ds_write") or op.startswith("ds_add") or op.startswith("ds_max"):
            i.cls = "ds"; rd = allr
        elif op.startswith("s_load") or op.startswith("s_memtime") or op.startswith("s_memrealtime"):
            i.cls = "smem"; wr = O[0]; rd = [r for o in O[1:] for r in o]
        elif op.startswith("s_"):
            i.cls = "salu"
            if op.startswith(("s_cmp", "s_cbranch", "s_branch", "s_barrier", "s_nop", "s_endpgm", "s_setprio", "s_sleep", "s_bitcmp", "s_sethalt", "s_waitcnt")):
                rd = allr
                if op == "s_nop": i.ws = int(ops[0]) + 1
                if op.startswith("s_cbranch_vcc"): rd = rd + [("x", "vcc")]
                if op.startswith("s_cbranch_exec"): rd = rd + [("x", "exec")]
            elif "saveexec" in op:
                wr = O[0] + [("x", "exec")]; rd = O[1] + [("x", "exec")]
            else:
                wr = O[0]; rd = [r for o in O[1:] for r in o]
                if op in ("s_addc_u32", "s_subb_u32", "s_cselect_b32", "s_cselect_b64"): pass
        elif op.startswith("v_"):
            i.cls = "valu"
            if op.startswith("v_cmpx"):
                wr = [("x", "exec")] + (O[0] if False else []); rd = allr
            elif op.startswith("v_cmp"):
                wr = O[0]; rd = [r for o in O[1:] for r in o]
            elif "permlane" in op and "swap" in op:
                wr = O[0] + O[1]; rd = O[0] + O[1]
            elif op.startswith(("v_add_co", "v_sub_co", "v_subrev_co")):
                wr = O[0] + O[1]; rd = [r for o in O[2:] for r in o]
            elif op.startswith(("v_addc_co", "v_subb_co")):
                wr = O[0] + O[1]; rd = [r for o in O[2:] for r in o]
            else:
                wr = O[0]; rd = [r for o in O[1:] for r in o]
                if op.startswith(("v_fmac", "v_mac", "v_dot2c", "v_pk_fmac")) : rd = rd + O[0]
                if op.startswith("v_cndmask") and len(ops) == 3: rd = rd + [("x", "vcc")]
                if op.startswith("v_writelane"): rd = rd + O[0]
            if any(k in mods for k in ("quad_perm", "row_shr", "row_shl", "row_ror", "row_bcast", "row_mirror", "row_half_mirror", "wave_", "row_newbcast", "row_share")):
                i.dpp = True
                if "bound_ctrl" not in mods or True: rd = rd + O[0]
            if "sdwa" in op or "op_sel" in mods: i.sdwa = True
        else:
            raise ValueError("unknown op " + op)
        i.rd = rd; i.wr = wr
        if self.auto_wait:
            self._auto(rd + wr)
        txt = op
        if ops: txt += " " + ", ".join(fmt_operand(x) for x in ops)
        if mods: txt += " " + mods
        i.text = txt
        self.ins.append(i)
        ticket = None
        if i.cls == "vmem":
            self.vm_seq += 1; ticket = self.vm_seq
            for r in wr: self.pend[r] = ("vm", self.vm_seq)
        elif i.cls == "ds":
            self.lgkm_seq += 1; ticket = self.lgkm_seq
            for r in wr: self.pend[r] = ("lgkm", self.lgkm_seq)
        elif i.cls == "smem":
            self.lgkm_seq += 1; ticket = self.lgkm_seq; self.smem_out = True
            for r in wr: self.pend[r] = ("lgkm", self.lgkm_seq)
        return ticket

    def __getattr__(self, name):
        if name.startswith(("v_", "s_", "ds_", "buffer_", "global_")):
            def f(*ops, mods="", comment=None): return self.I(name, *ops, mods=mods, comment=comment)
            return f
        raise AttributeError(name)

    def finalize(self):
        out = []
        hist = []
        nops_inserted = 0
        def need(prev, cur):
            n = 0
            pw = set(prev.wr);
            if not pw and prev.cls != "mfma" and not prev.wide_store: return 0
            crd = set(cur.rd); cwr = set(cur.wr)
            if prev.cls == "mfma":
                P = mfma_passes(prev.op)
                idx = {2: 0, 4: 1, 8: 2, 16: 3}[P]
                if cur.cls == "mfma":
                    if pw & set(cur.srcA + cur.srcB): n = max(n, [5, 8, 12, 20][idx])
                    c = set(cur.srcC)
                    if pw & c:
                        if c == pw and mfma_passes(cur.op) == P: n = max(n, [2, 0, 0, 0][idx])
                        else: n = max(n, [4, 6, 10, 18][idx])
                    if (pw & cwr) and not (pw & c): n = max(n, [4, 6, 10, 18][idx])
                elif cur.cls in ("valu", "vmem", "ds"):
                    if pw & (crd | cwr): n = max(n, [5, 8, 12, 20][idx])
                    if cur.cls == "valu" and set(prev.srcC) & cwr: n = max(n, [1, 3, 7, 15][idx])
                return n
            if prev.cls == "valu":
                vw = {r for r in pw if r[0] in "va"}
                sw = {r for r in pw if r[0] == "s" or r == ("x", "vcc")}
                ew = ("x", "exec") in pw
                if cur.cls == "mfma":
                    if vw & crd: n = max(n, 2)
                    if ew: n = max(n, 4)
                if cur.cls == "valu":
                    if cur.dpp and vw & crd: n = max(n, 2)
                    if cur.dpp and ew: n = max(n, 5)
                    if "permlane" in cur.op and vw & crd: n = max(n, 2)
                    if "permlane" in cur.op and ew: n = max(n, 4)
                    if cur.op.startswith(("v_readlane", "v_readfirstlane")):
                        if vw & crd: n = max(n, 1)
                        if ew: n = max(n, 4)
                    if cur.op.startswith(("v_readlane", "v_writelane")) and sw & crd: n = max(n, 4)
                    if sw & crd: n = max(n, 2)
                    if prev.op in TRANS and vw & crd and cur.op not in TRANS: n = max(n, 1)
                    if prev.op in TRANS and vw & crd: n = max(n, 1)
                    if prev.sdwa and vw & (crd | cwr): n = max(n, 1)
                    if prev.op.startswith("v_dot") and vw & (crd | cwr):
                        if not (cur.op == prev.op and not (vw & set(r for o in cur.ops[1:3] for r in regs_of(o)))): n = max(n, 3)
                    if ew and ("x", "exec") in crd: n = max(n, 2)
                if cur.cls in ("vmem", "ds", "mfma") and prev.op.startswith("v_dot") and vw & (crd | cwr): n = max(n, 3)
                if cur.cls == "vmem" and sw & crd: n = max(n, 5)
                if cur.cls == "salu" and sw & crd: n = max(n, 1)
                if cur.cls == "salu" and cur.op.startswith("s_cbranch_vcc") and ("x","vcc") in pw: n = max(n, 5)
            if prev.cls == "salu":
                if ("x", "m0") in pw and (cur.lds_dma): n = max(n, 1)
            if prev.wide_store and cur.cls in ("valu", "mfma", "ds", "vmem"):
                data = set(prev.rd)
                if data & cwr: n = max(n, 2)
            return n
        for it in self.ins:
            if isinstance(it, str):
                if it.endswith(":"):
                    hist = []
                out.append(("raw", it)); continue
            req = 0
            dist = 0
            for p in reversed(hist):
                r = need(p, it) - dist
                if r > req: req = r
                dist += p.ws
                if dist > 24: break
            if req > 0:
                nops_inserted += 1
                while req > 0:
                    k = min(req, 16)
                    n = Ins(); n.op = "s_nop"; n.text = f"s_nop {k - 1}"; n.ws = k; n.cls = "salu"; n.rd = []; n.wr = []
                    n.dpp = False; n.wide_store = False; n.lds_dma = False; n.sdwa = False
                    out.append(("ins", n)); hist.append(n); req -= k
            out.append(("ins", it)); hist.append(it)
            if len(hist) > 40: hist = hist[-40:]
        self.nops_inserted = nops_inserted
        lines = []
        for k, it in out:
            if k == "raw": lines.append(it)
            else:
                t = "    " + it.text
                if getattr(it, "comment", None): t += "   ; " + it.comment
                lines.append(t)
        return "\n".join(lines) + "\n"

class Alloc:
    def __init__(self, kind, lo, hi):
        self.kind = kind; self.lo = lo; self.hi = hi; self.free = [True] * (hi - lo)
        self.names = {}
    def get(self, n=1, align=1, name=None):
        if n > 1 and align == 1: align = 2 if n < 4 else (4 if self.kind == "s" else 2)
        i = self.lo
        while i + n <= self.hi:
            if i % align == 0 and all(self.free[i - self.lo + j] for j in range(n)):
                for j in range(n): self.free[i - self.lo + j] = False
                r = R(self.kind, i, n)
                if name: self.names[name] = r
                return r
            i += 1
        raise RuntimeError(f"out of {self.kind} regs ({n})")
    def put(self, r):
        for j in range(r.n):
            assert not self.free[r.i - self.lo + j]
            self.free[r.i - self.lo + j] = True
    def used_max(self):
        m = self.lo
        for j, f in enumerate(self.free):
            if not f: m = self.lo + j + 1
        return m
```

```python
import sys, math
sys.path.insert(0, "dev")
from asmlib import *

NAME = "gated_mix__linear_attn_block__sliding_local_dilated__prompt"
NSLOT = 3
WSLOT = 20480
XSLOT = 16384
XBASE = WSLOT * NSLOT
KBASE = XBASE
VBASE = KBASE + 8 * 2880
VEND = VBASE + 8 * 3920
QBASE = 0
K1_LDS = 115840
SCR = XBASE
O_OFF = 0
G_OFF = 8 << 20
KVP_OFF = 9 << 20
HALO_OFF = 11 << 20
WOP_OFF = 12 << 20
WS_BYTES = 16 << 20
LOG2E = 1.4426950408889634

def header(launches):
    h = open("cdna_kernels/" + NAME + ".s.ref").read().split("\n")
    out = []
    for l in h:
        if l.startswith("; @launch"):
            out += launches
            continue
        if l.startswith(".amdgcn_target"): break
        out.append(l)
    return "\n".join(out) + "\n"

def kernel_desc(name, vgpr, sgpr, accum):
    return f""".amdhsa_kernel {name}
  .amdhsa_next_free_vgpr {vgpr}
  .amdhsa_next_free_sgpr {sgpr}
  .amdhsa_accum_offset {accum}
  .amdhsa_group_segment_fixed_size 0
  .amdhsa_kernarg_size 80
  .amdhsa_user_sgpr_count 2
  .amdhsa_user_sgpr_kernarg_segment_ptr 1
  .amdhsa_system_sgpr_workgroup_id_x 1
.end_amdhsa_kernel
"""

def interleave(main, fill, lead=0):
    n = len(main); m = len(fill)
    slots = [[] for _ in range(n)]
    avail = n - lead
    for j, f in enumerate(fill):
        pos = lead + (j * avail) // max(m, 1)
        slots[min(pos, n - 1)].append(f)
    for i in range(n):
        main[i]()
        for f in slots[i]: f()

def rr(chains):
    out = []
    k = 0
    while True:
        any_ = False
        for c in chains:
            if k < len(c): out.append(c[k]); any_ = True
        if not any_: break
        k += 1
    return out

def run(th):
    for f in th: f()

class K1:
    def __init__(self, opts):
        self.o = opts
        self.P = Prog()
        P = self.P
        self.ACC1 = v(0, 80); self.ACC2 = v(80, 40); self.WF = v(120, 40); self.XV = v(192, 64); self.XA = a(0, 256)
        va = Alloc("v", 160, 192)
        self.wta = [va.get() for _ in range(7)]
        self.xa = [[va.get() for _ in range(2)] for _ in range(2)]
        self.wvo = [va.get() for _ in range(5)]
        self.xvo = [va.get() for _ in range(4)]
        self.T = [va.get() for _ in range(10)]
        self.lane = va.get()
        self.sX = s(8, 4); self.sW = s(12, 4); self.sWS = s(16, 4); self.sDBG = s(20, 4); self.sGW = s(24, 4); self.sWO = s(4, 4)
        self.s_id = s(2)
        (self.s_xcd, self.s_j, self.s_br, self.s_rb, self.s_hg, self.s_w, self.s_rh, self.s_ch,
         self.s_t0, self.s_t1, self.s_xso, self.s_wso, self.s_m0x, self.s_m0w, self.s_t2, self.s_t3) = [s(28 + i) for i in range(16)]
        self.s_part = [s(44 + 2 * i, 2) for i in range(5)]
        self.kA = s(56, 4); self.kB = s(60, 4); self.kC = s(64, 4); self.kD = s(68, 4); self.kE = s(54, 2)
        self.msk = [s(72 + 2 * i, 2) for i in range(8)]
        self.sc = [s(88 + i) for i in range(8)]
        self.vm_ticket = {}
        self.uid = 0
        self.nst = 0

    def lbl(self, name):
        self.uid += 1
        return f"L{name}_{self.uid}"
    def xfrag(self, ks, m):
        idx = (ks * 4 + m) * 4
        return self.XA.sub(idx, 4) if ks < 16 else self.XV.sub(idx - 256, 4)
    def acc1(self, t, m): return self.ACC1.sub((t * 4 + m) * 4, 4)
    def acc2(self, t, m): return self.ACC2.sub((t * 4 + m) * 4, 4)
    def F(self, i):
        if i < 10: return self.WF.sub(i * 4, 4)
        return self.ACC2.sub(32 + (i - 10) * 4, 4)

    def stamp(self):
        if not self.o.get("stamps"): return
        k = self.nst; self.nst += 1
        assert k < 8
        self.P.s_memtime(s(56 + 2 * k, 2))
    def dump_stamps(self):
        if not self.o.get("stamps"): return
        P = self.P; t0, t1 = self.T[0], self.T[1]
        P.wait(lgkm=0)
        P.s_lshl_b32(self.s_t0, self.s_id, 2); P.s_add_u32(self.s_t0, self.s_t0, self.s_w); P.s_lshl_b32(self.s_t0, self.s_t0, 6)
        P.s_add_u32(self.s_t0, self.s_t0, 15 << 20)
        P.v_mov_b32(t0, self.s_t0)
        for k in range(self.nst):
            P.v_mov_b32(t1, s(56 + 2 * k)); P.buffer_store_dword(t1, t0, self.sWS, 0, mods=f"offen offset:{4 * k}")
        P.v_mov_b32(t1, s(96)); P.buffer_store_dword(t1, t0, self.sWS, 0, mods=f"offen offset:60")
    def prologue(self):
        P = self.P; T = self.T; lane = self.lane
        (t0, t1, t2, t3, t4, t5) = T[:6]
        s_id = self.s_id
        P.s_cmp_ge_u32(s_id, 256)
        P.s_cbranch_scc1("K1_END")
        if self.o.get("stamps"): P.s_memtime(s(96, 2))
        P.s_load_dwordx4(self.kA, s(0, 2), 0)
        P.s_load_dwordx4(self.kB, s(0, 2), 24)
        P.s_load_dwordx4(self.kC, s(0, 2), 64)
        P.s_load_dwordx2(self.kD[0:2], s(0, 2), 48)
        P.s_load_dwordx2(self.kD[2:4], s(0, 2), 16)
        P.s_load_dwordx2(self.kE, s(0, 2), 40)
        P.v_mov_b32(self.tidr, v(0))
        P.v_and_b32(lane, 63, v(0))
        P.v_lshrrev_b32(t0, 6, v(0))
        P.v_readfirstlane_b32(self.s_w, t0)
        P.s_and_b32(self.s_xcd, s_id, 7)
        P.s_lshr_b32(self.s_j, s_id, 3)
        P.s_lshr_b32(self.s_br, self.s_xcd, 2)
        P.s_lshr_b32(self.s_t0, self.s_xcd, 1); P.s_and_b32(self.s_t0, self.s_t0, 1); P.s_lshl_b32(self.s_t0, self.s_t0, 3)
        P.s_and_b32(self.s_t1, self.s_j, 7); P.s_add_u32(self.s_rb, self.s_t0, self.s_t1)
        P.s_and_b32(self.s_t0, self.s_xcd, 1); P.s_lshl_b32(self.s_t0, self.s_t0, 2); P.s_lshr_b32(self.s_t1, self.s_j, 3)
        P.s_add_u32(self.s_hg, self.s_t0, self.s_t1)
        P.s_lshr_b32(self.s_rh, self.s_w, 1); P.s_and_b32(self.s_ch, self.s_w, 1)
        xvo = self.xvo
        P.v_lshrrev_b32(t0, 3, lane)
        P.v_and_b32(t1, 7, lane)
        P.v_xor_b32(t1, t1, t0)
        P.v_lshlrev_b32(t1, 4, t1)
        P.s_lshl_b32(self.s_t0, self.s_rb, 7); P.s_lshl_b32(self.s_t1, self.s_w, 5); P.s_add_u32(self.s_t0, self.s_t0, self.s_t1)
        P.v_lshlrev_b32(t0, 1, t0)
        P.v_add_u32(t0, self.s_t0, t0)
        P.s_movk_i32(self.s_t1, 1280)
        P.v_mul_lo_u32(t0, t0, self.s_t1)
        P.v_add_u32(xvo[0], t0, t1)
        P.v_add_u32(xvo[1], 16 * 1280 - 1024, xvo[0])
        P.v_add_u32(xvo[2], 1280, xvo[0])
        P.v_add_u32(xvo[3], 17 * 1280 - 1024, xvo[0])
        sX, sW, sWS, sDBG, sGW = self.sX, self.sW, self.sWS, self.sDBG, self.sGW
        kA, kB, kC, kD = self.kA, self.kB, self.kC, self.kD
        P.s_cmp_eq_u32(self.s_br, 0)
        P.s_mov_b32(sX[0], kA[0]); P.s_mov_b32(sX[1], kA[1])
        P.s_cselect_b32(sW[0], kA[2], kB[2]); P.s_cselect_b32(sW[1], kA[3], kB[3])
        P.s_mov_b32(sX[2], 2048 * 1280); P.s_mov_b32(sX[3], 0x20000)
        P.s_mov_b32(sW[2], 640 * 3840); P.s_mov_b32(sW[3], 0x20000)
        P.s_lshl_b32(self.s_m0x, self.s_w, 12); P.s_add_u32(self.s_m0x, self.s_m0x, XBASE)
        P.s_mul_i32(self.s_m0w, self.s_w, 5120)
        run(self.dma_x(0))
        P.s_mov_b32(sWS[0], kC[2]); P.s_mov_b32(sWS[1], kC[3]); P.s_mov_b32(sWS[2], WS_BYTES); P.s_mov_b32(sWS[3], 0x20000)
        P.s_mov_b32(sDBG[0], kC[0]); P.s_mov_b32(sDBG[1], kC[1]); P.s_mov_b32(sDBG[2], 256); P.s_mov_b32(sDBG[3], 0x20000)
        P.s_mov_b32(sGW[0], kD[0]); P.s_mov_b32(sGW[1], kD[1]); P.s_mov_b32(sGW[2], 1280); P.s_mov_b32(sGW[3], 0x20000)
        sWO = self.sWO
        P.s_bitcmp0_b32(self.s_id, 3)
        P.s_cselect_b32(sWO[0], kD[2], self.kE[0]); P.s_cselect_b32(sWO[1], kD[3], self.kE[1])
        P.s_mov_b32(sWO[2], 640 * 1280); P.s_mov_b32(sWO[3], 0x20000)
        s_t0, s_t1 = self.s_t0, self.s_t1
        P.s_mul_i32(s_t0, self.s_w, 16 * 3840)
        P.s_mul_i32(s_t1, self.s_hg, 160)
        P.s_add_u32(s_t0, s_t0, s_t1)
        P.s_add_u32(s_t0, s_t0, 1280)
        P.s_movk_i32(s_t1, 205)
        s_3840 = self.s_t2; P.s_movk_i32(s_3840, 3840)
        chains = []
        for i in range(5):
            c0, c1, c2, c3 = [v(4 * i + q) for q in range(4)]
            vm = self.msk[i]
            sp = self.s_part[i]
            wv = self.wvo[i]
            ch = [
                lambda c0=c0, i=i: P.v_add_u32(c0, 64 * i, lane),
                lambda c0=c0, c1=c1: P.v_mul_lo_u32(c1, c0, s_t1),
                lambda c1=c1: P.v_lshrrev_b32(c1, 12, c1),
                lambda c1=c1, c2=c2: P.v_mul_u32_u24(c2, 20, c1),
                lambda c0=c0, c2=c2: P.v_sub_u32(c2, c0, c2),
                lambda c1=c1, c3=c3: P.v_lshrrev_b32(c3, 2, c1),
                lambda c3=c3: P.v_and_b32(c3, 2, c3),
                lambda c2=c2, c3=c3: P.v_sub_u32(c2, c2, c3),
                lambda c2=c2, c3=c3: P.v_add_u32(c3, 20, c2),
                lambda c2=c2, vm=vm: P.v_cmp_gt_i32(vm, 0, c2),
                lambda c1=c1: P.v_mul_lo_u32(c1, c1, s_3840),
                lambda c2=c2, c3=c3, vm=vm: P.v_cndmask_b32(c2, c2, c3, vm),
                lambda c2=c2, sp=sp: P.v_cmp_lt_u32(sp, 9, c2),
                lambda c2=c2, c3=c3: P.v_subrev_u32(c3, 11, c2),
                lambda c2=c2, vm=vm: P.v_cmp_eq_u32(vm, 10, c2),
                lambda c1=c1: P.v_add_u32(c1, s_t0, c1),
                lambda c0=c0, c1=c1: P.v_add_u32(c0, 1280, c1),
                lambda c3=c3, vm=vm: P.v_cndmask_b32(c3, c3, 9, vm),
                lambda c0=c0, c1=c1, sp=sp: P.v_cndmask_b32(c1, c1, c0, sp),
                lambda c2=c2, c3=c3, sp=sp: P.v_cndmask_b32(c2, c2, c3, sp),
                lambda c2=c2: P.v_lshlrev_b32(c2, 4, c2),
                lambda c1=c1, c2=c2, wv=wv: P.v_add_u32(wv, c1, c2),
            ]
            if i in (1, 2, 3): ch.append(lambda wv=wv, i=i: P.v_subrev_u32(wv, 1024 * i, wv))
            chains.append(ch)
        run(rr(chains))
        run(self.dma_w(0)); self.vm_ticket[0] = P.vm_seq
        for c in (1, 2):
            run(self.dma_x(c)); run(self.dma_w(c)); self.vm_ticket[c] = P.vm_seq
        g2 = T[6]; rowoff = T[7]
        P.v_lshrrev_b32(t1, 4, lane)
        P.v_lshrrev_b32(t0, 2, lane); P.v_and_b32(t0, 3, t0)
        P.v_lshlrev_b32(t2, 3, t1); P.v_add_u32(t0, t0, t2)
        P.v_mul_u32_u24(rowoff, 320, t0)
        P.v_and_b32(g2, 1, t1); P.v_lshlrev_b32(g2, 1, g2)
        s_c80 = self.s_t3; P.s_mul_i32(s_c80, self.s_ch, 80)
        s_2ch = self.s_t2; P.s_lshl_b32(s_2ch, self.s_ch, 1)
        c4 = T[8]; P.v_and_b32(c4, 3, lane)
        chains = []
        def wt_chain(k, dst, kind, part):
            c0, c1, c2, c3 = [v(4 * k + q) for q in range(4)]
            vm = self.msk[k % 8]
            ch = []
            if kind in ("m0", "m1"):
                ch.append(lambda: P.v_lshlrev_b32(c0, 3, c4))
                ch.append(lambda: P.v_add_u32(c0, s_c80, c0))
                if kind == "m1": ch.append(lambda: P.v_add_u32(c0, 40, c0))
            elif kind == "t4":
                ch.append(lambda: P.v_and_b32(c0, 1, c4))
                ch.append(lambda: P.v_mul_u32_u24(c0, 40, c0))
                ch.append(lambda: P.v_add_u32(c0, s_c80, c0))
                ch.append(lambda: P.v_add_u32(c0, 32, c0))
            elif kind == "q4":
                ch.append(lambda: P.v_xor_b32(c0, s_2ch, c4))
                ch.append(lambda: P.v_mul_u32_u24(c0, 40, c0))
                ch.append(lambda: P.v_add_u32(c0, 32, c0))
            ch.append(lambda: P.v_lshrrev_b32(c1, 4, c0))
            if part != 0:
                ch.append(lambda: P.v_add_u32(c2, 11, c1))
                ch.append(lambda: P.v_cmp_eq_u32(vm, 9, c1))
                ch.append(lambda: P.v_and_b32(c3, 2, c4))
                ch.append(lambda: P.v_and_b32(c0, 8, c0))
                ch.append(lambda: P.v_cndmask_b32(c2, c2, 10, vm))
                if part == 1: ch.append(lambda: P.v_mov_b32(c1, c2))
                else:
                    ch.append(lambda: P.v_cmp_ne_u32(vm, 0, c3))
                    ch.append(lambda: P.v_cndmask_b32(c1, c1, c2, vm))
            else:
                ch.append(lambda: P.v_and_b32(c0, 8, c0))
            ch.append(lambda: P.v_add_u32(c1, c1, g2))
            ch.append(lambda: P.v_subrev_u32(c2, 20, c1))
            ch.append(lambda: P.v_cmp_lt_u32(vm, 19, c1))
            ch.append(lambda: P.v_add_u32(c0, c0, rowoff))
            ch.append(lambda: P.v_cndmask_b32(c1, c1, c2, vm))
            ch.append(lambda: P.v_lshlrev_b32(c1, 4, c1))
            ch.append(lambda: P.v_add_u32(dst, c1, c0))
            return ch
        specs = [("m0", 0), ("m1", 0), ("m0", 1), ("m1", 1), ("t4", 2), ("q4", 0), ("q4", 1)]
        for k, (kind, part) in enumerate(specs): chains.append(wt_chain(k, self.wta[k], kind, part))
        xa = self.xa
        xc = [
            lambda: P.v_and_b32(t0, 15, lane),
            lambda: P.s_lshl_b32(s_t0, self.s_rh, 6),
            lambda: P.v_add_u32(t0, s_t0, t0),
            lambda: P.v_lshlrev_b32(t0, 7, t0),
            lambda: P.v_lshrrev_b32(t1, 4, lane),
            lambda: P.v_and_b32(t2, 7, lane),
            lambda: P.v_xor_b32(t1, t1, t2),
            lambda: P.v_lshlrev_b32(t1, 4, t1),
            lambda: P.v_add_u32(t0, t0, t1),
            lambda: P.s_lshl_b32(s_t0, self.s_ch, 12),
            lambda: P.s_add_u32(s_t1, s_t0, XBASE),
            lambda: P.v_add_u32(xa[0][0], s_t1, t0),
            lambda: P.s_sub_u32(s_t1, XBASE + 4096, s_t0),
            lambda: P.v_add_u32(xa[0][1], s_t1, t0),
            lambda: P.v_xor_b32(xa[1][0], 64, xa[0][0]),
            lambda: P.v_xor_b32(xa[1][1], 64, xa[0][1]),
        ]
        chains.append(xc)
        run(rr(chains))
        M = self.msk
        P.v_and_b32(t0, 15, lane); P.v_cmp_gt_u32(M[0], 8, t0)
        P.v_and_b32(t0, 4, lane); P.v_cmp_ne_u32(M[1], 0, t0)
        P.v_and_b32(t0, 16, lane); P.v_cmp_ne_u32(M[2], 0, t0)
        P.v_lshrrev_b32(t0, 4, lane)
        P.v_cmp_eq_u32(M[3], 0, t0)
        P.v_cmp_eq_u32(M[4], 1, t0)
        P.v_and_b32(t0, 3, lane)
        P.v_cmp_le_u32(M[5], 1, t0)
        P.v_cmp_le_u32(M[6], 2, t0)
        P.v_cmp_le_u32(M[7], 3, t0)
        P.s_mov_b32(self.sc[0], f32bits(LOG2E))
        P.s_mov_b32(self.sc[1], f32bits(1e-6))
        P.s_mov_b32(self.sc[2], 0x3F803F80)
        P.s_mov_b32(self.sc[3], 0x7FFFFFF0)

    def dma_x(self, c):
        P = self.P; slot = c % NSLOT
        th = []
        def f0():
            P.s_add_u32(M0, self.s_m0x, slot * XSLOT)
            P.s_movk_i32(self.s_xso, c * 128)
        th.append(f0)
        th.append(lambda: P.buffer_load_dwordx4(self.xvo[0], self.sX, self.s_xso, mods="offen lds"))
        th.append(lambda: P.buffer_load_dwordx4(self.xvo[1], self.sX, self.s_xso, mods="offen offset:1024 lds"))
        th.append(lambda: P.s_add_u32(M0, self.s_m0x, slot * XSLOT + 2048))
        th.append(lambda: P.buffer_load_dwordx4(self.xvo[2], self.sX, self.s_xso, mods="offen lds"))
        th.append(lambda: P.buffer_load_dwordx4(self.xvo[3], self.sX, self.s_xso, mods="offen offset:1024 lds"))
        return th
    def dma_w(self, gc):
        P = self.P; slot = gc % NSLOT
        th = []
        so = gc * 64 * 3840 if gc < 10 else (gc - 10) * 128 * 3840
        def f0():
            P.s_add_u32(M0, self.s_m0w, slot * WSLOT)
            P.s_mov_b32(self.s_wso, so)
        th.append(f0)
        for i in range(4):
            th.append(lambda i=i: P.buffer_load_dwordx4(self.wvo[i], self.sW, self.s_wso, mods=f"offen offset:{1024 * i} lds"))
        th.append(lambda: P.s_add_u32(M0, self.s_m0w, slot * WSLOT + 4096))
        th.append(lambda: P.buffer_load_dwordx4(self.wvo[4], self.sW, self.s_wso, mods="offen lds"))
        return th
    def issue_dma(self, gc):
        th = []
        if gc < 10: th += self.dma_x(gc)
        if gc < 15:
            th += self.dma_w(gc)
            def mark(): self.vm_ticket[gc] = self.P.vm_seq
            th.append(mark)
        return th
    def switch_wvo(self):
        P = self.P; t0, t1 = self.T[0], self.T[1]
        th = []
        for i in range(5):
            def f(i=i):
                P.v_subrev_u32(t0, 1280, self.wvo[i])
                P.v_add_u32(t1, 245760 - 2560, self.wvo[i])
                P.v_cndmask_b32(self.wvo[i], t0, t1, self.s_part[i])
            th.append(f)
        return th
    def sync_point(self, next_gc):
        P = self.P
        P.wait_vm(self.vm_ticket.get(next_gc))
        P.wait(lgkm=0)
        P.s_barrier()

    def rd_w(self, dst, addr, off):
        P = self.P
        return [lambda: P.ds_read_b64_tr_b16(dst[0:2], addr, mods=f"offset:{off}"),
                lambda: P.ds_read_b64_tr_b16(dst[2:4], addr, mods=f"offset:{off + 1280}")]
    def tiles_p1(self, br):
        if br == 0:
            return [(0, False, 0, range(4)), (1, False, 1, range(4)), (2, False, 2, range(4)), (3, False, 3, range(4)), (4, False, 4, range(4))]
        return [(0, True, 0, range(4)), (1, True, 1, range(4)), (2, False, 2, range(4)), (3, False, 3, range(4)),
                (5, True, "k4", range(2)), (6, False, "v4", range(2))]
    def fslot(self, br, buf, ti):
        if br == 0: return buf * 5 + ti
        return buf * 6 + ti
    def rd_p1(self, br, c, ks):
        P = self.P; slot = c % NSLOT
        wo = slot * WSLOT + ks * 10240
        tl = self.tiles_p1(br)
        th = self.rd_w(self.F(self.fslot(br, ks, 0)), self.wta[tl[0][0]], wo)
        for m in range(4):
            th.append(lambda m=m: P.ds_read_b128(self.xfrag(c * 2 + ks, m), self.xa[ks][m >> 1], mods=f"offset:{slot * XSLOT + (m & 1) * 2048}"))
        for ti in range(1, len(tl)): th += self.rd_w(self.F(self.fslot(br, ks, ti)), self.wta[tl[ti][0]], wo)
        return th
    def mf_p1(self, br, c, ks):
        P = self.P; th = []; K = c * 2 + ks
        for ti, (ai, o2, accid, ms) in enumerate(self.tiles_p1(br)):
            for m in ms:
                if accid == "k4": acc = self.acc1(4, m)
                elif accid == "v4": acc = self.acc1(4, 2 + m)
                else: acc = self.acc1(accid, m)
                def f(ti=ti, m=m, o2=o2, acc=acc):
                    A = self.xfrag(K, m); B = self.F(self.fslot(br, ks, ti))
                    if o2: A, B = B, A
                    P.v_mfma_f32_16x16x32_bf16(acc, A, B, 0 if K == 0 else acc)
                th.append(f)
        return th
    def PR(self, br):
        if br == 0: return [[0, 1, 2], [5, 6, 7], [3, 4, 8]]
        return [[0, 1, 2], [6, 7, 8], [3, 4, 5]]
    def rd_p2(self, br, n):
        gc = 10 + n // 4; kk = n % 4; part = kk >> 1
        slot = gc % NSLOT
        wo = slot * WSLOT + (kk & 1) * 10240
        fr = self.PR(br)[n % 3]
        return (self.rd_w(self.F(fr[0]), self.wta[0 + 2 * part], wo) + self.rd_w(self.F(fr[1]), self.wta[1 + 2 * part], wo)
                + self.rd_w(self.F(fr[2]), self.wta[5 + part], wo))
    def mf_p2(self, br, n):
        P = self.P; th = []; fr = self.PR(br)[n % 3]
        for t in range(3):
            for m in range(4 if t < 2 else 2):
                def f(t=t, m=m):
                    P.v_mfma_f32_16x16x32_bf16(self.acc2(t, m), self.F(fr[t]), self.xfrag(n, m), 0 if n == 0 else self.acc2(t, m))
                th.append(f)
        return th
    def pass1(self, br, extra=None):
        P = self.P
        extra = extra or {}
        P.wait_vm(self.vm_ticket[0]); P.s_barrier()
        run(self.rd_p1(br, 0, 0))
        for c in range(10):
            interleave(self.mf_p1(br, c, 0), self.rd_p1(br, c, 1) + extra.get((c, 0), []))
            self.sync_point(c + 1)
            fill = []
            if c + 3 == 10: fill += self.switch_wvo()
            fill += self.issue_dma(c + 3)
            if c < 9:
                interleave(self.mf_p1(br, c, 1), self.rd_p1(br, c + 1, 0) + fill + extra.get((c, 1), []))
            else:
                interleave(self.mf_p1(br, c, 1), fill)
    def pass2(self, br):
        P = self.P
        run(self.rd_p2(br, 0)); run(self.rd_p2(br, 1))
        for n in range(20):
            gc = 10 + n // 4
            fill = []
            if n % 4 == 2:
                if gc + 1 < 15: self.sync_point(gc + 1)
                fill += self.issue_dma(gc + 3)
            rds = self.rd_p2(br, n + 2) if n + 2 < 20 else []
            interleave(self.mf_p2(br, n), rds + fill)

    def phi(self, dst, x, tmp):
        P = self.P
        return [lambda: P.v_mul_f32(tmp, self.sc[0], x),
                lambda: P.v_exp_f32(tmp, tmp, mods="clamp"),
                lambda: P.v_max_f32(dst, self.sc[1], x),
                lambda: P.v_add_f32(dst, dst, tmp)]
    def poll(self, SRD, voff, cond_fn, name):
        P = self.P; t = self.T[9]
        L = self.lbl(name); Ld = self.lbl(name + "d")
        P.wait_all()
        P.s_mov_b32(self.s_t3, 0)
        P.label(L)
        P.buffer_load_dword(t, voff, SRD, 0, mods="offen sc1")
        P.wait(vm=0)
        P.v_readfirstlane_b32(self.s_t2, t)
        cond_fn(self.s_t2)
        P.s_cbranch_scc1(Ld)
        P.s_add_u32(self.s_t3, self.s_t3, 1)
        P.s_cmp_lt_u32(self.s_t3, 1 << 15)
        P.s_cbranch_scc1(L)
        P.label(Ld)

    def gate_loads(self):
        P = self.P; t0, t1 = self.T[0], self.T[1]; lane = self.lane
        G = self.ACC2
        P.s_lshl_b32(self.s_t0, self.s_rb, 7); P.s_lshl_b32(self.s_t1, self.s_hg, 4); P.s_add_u32(self.s_t0, self.s_t0, self.s_t1)
        P.s_lshl_b32(self.s_t1, self.s_w, 2); P.s_add_u32(self.s_t0, self.s_t0, self.s_t1)
        P.v_lshrrev_b32(t0, 4, lane); P.v_add_u32(t0, self.s_t0, t0)
        self.g_row = self.T[5]
        P.v_mov_b32(self.g_row, t0)
        P.s_movk_i32(self.s_t1, 1280)
        P.v_mul_lo_u32(t0, t0, self.s_t1)
        P.v_and_b32(t1, 15, lane); P.v_lshlrev_b32(t1, 4, t1)
        P.v_add_u32(t0, t0, t1)
        for i in range(5):
            P.buffer_load_dwordx4(G.sub(4 * i, 4), t0, self.sX, 0, mods=f"offen offset:{256 * i}")
            P.buffer_load_dwordx4(G.sub(20 + 4 * i, 4), t1, self.sGW, 0, mods=f"offen offset:{256 * i}")
    def gate_compute(self):
        P = self.P; G = self.ACC2; T = self.T
        acc = [T[0], T[1], T[2], T[3]]
        th = []
        for i in range(5):
            for q in range(4):
                th.append(lambda i=i, q=q: P.v_dot2_f32_bf16(acc[q], G[4 * i + q], G[20 + 4 * i + q], 0 if i == 0 else acc[q]))
        th.append(lambda: P.v_add_f32(acc[0], acc[0], acc[1]))
        th.append(lambda: P.v_add_f32(acc[2], acc[2], acc[3]))
        th.append(lambda: P.v_add_f32(acc[0], acc[0], acc[2]))
        for sh in (8, 4, 2, 1):
            th.append(lambda sh=sh: P.v_add_f32(acc[0], acc[0], acc[0], mods=f"row_ror:{sh} row_mask:0xf bank_mask:0xf"))
        def fin():
            P.v_mul_f32(acc[0], -LOG2E, acc[0])
            P.v_exp_f32(acc[0], acc[0])
            P.v_add_f32(acc[0], 1.0, acc[0])
            P.v_rcp_f32(acc[0], acc[0])
            P.v_lshlrev_b32(acc[1], 2, self.g_row)
            P.v_add_u32(acc[1], G_OFF, acc[1])
            P.v_and_b32(acc[2], 15, self.lane)
            P.v_cmp_eq_u32(VCC, 0, acc[2])
            P.v_mov_b32(acc[3], self.sc[3])
            P.v_cndmask_b32(acc[1], acc[3], acc[1], VCC)
            P.buffer_store_dword(acc[0], acc[1], self.sWS, 0, mods="offen")
        th.append(fin)
        return th

    def a_epi1(self):
        P = self.P; T = self.T; M = self.msk; lane = self.lane
        acc1 = self.acc1
        chains = []
        k = 0
        for t in (0, 1):
            for m in range(4):
                for r in range(4):
                    x = acc1(t, m)[r]
                    chains.append(self.phi(x, x, T[k % 8])); k += 1
        for i in range(0, len(chains), 8): run(rr(chains[i:i + 8]))
        chains = []
        for m in range(4):
            for r in range(4):
                x = acc1(4, m)[r]; tmp = T[k % 4]; d2 = T[4 + k % 4]; k += 1
                c = self.phi(d2, x, tmp) + [lambda x=x, d2=d2: P.v_cndmask_b32(x, x, d2, M[0])]
                chains.append(c)
        for i in range(0, len(chains), 4): run(rr(chains[i:i + 4]))
        for me in (0, 2):
            for t in range(5):
                d = acc1(t, me); s0 = acc1(t, me); s1 = acc1(t, me + 1)
                P.v_cvt_pk_bf16_f32(d[0], s0[0], s0[1]); P.v_cvt_pk_bf16_f32(d[1], s0[2], s0[3])
                P.v_cvt_pk_bf16_f32(d[2], s1[0], s1[1]); P.v_cvt_pk_bf16_f32(d[3], s1[2], s1[3])
            P.v_mov_b32(T[0], self.sc[2])
            for j in range(4): P.v_cndmask_b32(acc1(4, me + 1)[j], acc1(4, me)[j], T[0], M[0])
        DKV0, DKV1, DX0, DX1 = acc1(0, 1), acc1(1, 1), acc1(2, 1), acc1(3, 1)
        DY0, DY1, DW = acc1(0, 3), acc1(1, 3), acc1(2, 3)
        for me in (0, 2):
            PK0, PK1, V0, V1, U4, V4 = acc1(0, me), acc1(1, me), acc1(2, me), acc1(3, me), acc1(4, me), acc1(4, me + 1)
            for D, A, B in ((DKV0, PK0, V0), (DKV1, PK1, V1), (DX0, PK0, V4), (DX1, PK1, V4), (DY0, U4, V0), (DY1, U4, V1), (DW, U4, V4)):
                P.v_mfma_f32_16x16x32_bf16(D, A, B, 0 if me == 0 else D)
        for r in range(4):
            P.v_cndmask_b32(DX0[r], DX0[r], DX1[r], M[1])
            P.v_cndmask_b32(DY0[r], DY0[r], DY1[r], M[2])
        for r in range(4):
            P.v_permlane32_swap_b32(DY0[r], DW[r])
        tiles = [DKV0, DKV1, DX0, DY0]
        wa, ra = T[0], T[1]
        P.v_lshlrev_b32(wa, 4, lane)
        P.s_lshl_b32(self.s_t0, self.s_w, 12); P.s_add_u32(self.s_t0, self.s_t0, SCR)
        P.s_xor_b32(self.s_t1, self.s_w, 2); P.s_lshl_b32(self.s_t1, self.s_t1, 12); P.s_add_u32(self.s_t1, self.s_t1, SCR)
        P.v_add_u32(ra, self.s_t1, wa)
        P.v_add_u32(wa, self.s_t0, wa)
        for t in range(4): P.ds_write_b128(wa, tiles[t], mods=f"offset:{1024 * t}")
        P.wait(lgkm=0); P.s_barrier()
        oth = [DX1, DY1, DW, acc1(3, 3)]
        for t in range(4): P.ds_read_b128(oth[t], ra, mods=f"offset:{1024 * t}")
        for t in range(4):
            for r in range(4): P.v_add_f32(tiles[t][r], tiles[t][r], oth[t][r])
        P.s_lshl_b32(self.s_t0, self.s_hg, 4); P.s_add_u32(self.s_t0, self.s_t0, self.s_rb)
        P.s_lshl_b32(self.s_t0, self.s_t0, 1); P.s_add_u32(self.s_t0, self.s_t0, self.s_ch)
        P.s_lshl_b32(self.s_t0, self.s_t0, 12); P.s_add_u32(self.s_t0, self.s_t0, KVP_OFF)
        P.v_lshlrev_b32(wa, 4, lane); P.v_add_u32(wa, self.s_t0, wa)
        P.s_cmp_eq_u32(self.s_rh, 0)
        P.s_cselect_b32(self.s_t0, 0, self.sc[3]); P.s_cselect_b32(self.s_t1, self.sc[3], 0)
        P.v_or_b32(ra, self.s_t0, wa); P.v_or_b32(wa, self.s_t1, wa)
        for t in range(4):
            P.buffer_store_dwordx4(tiles[t], ra if t < 2 else wa, self.sWS, 0, mods=f"offen offset:{1024 * t} sc1")
        P.wait(vm=0)
        P.s_lshl_b32(self.s_t0, self.s_hg, 1); P.s_add_u32(self.s_t0, self.s_t0, self.s_ch); P.s_lshl_b32(self.s_t0, self.s_t0, 2)
        P.v_mov_b32(wa, self.s_t0); P.v_mov_b32(ra, self.sc[3])
        P.v_cmp_eq_u32(VCC, 0, lane)
        P.v_cndmask_b32(wa, ra, wa, VCC)
        P.v_mov_b32(ra, 1)
        P.buffer_atomic_add(ra, wa, self.sDBG, 0, mods="offen sc1")

    def a_epi2(self):
        P = self.P; T = self.T; M = self.msk; lane = self.lane
        acc1, acc2 = self.acc1, self.acc2
        chains = []; k = 0
        for t in range(3):
            for m in range(4 if t < 2 else 2):
                for r in range(4):
                    x = acc2(t, m)[r]; chains.append(self.phi(x, x, T[k % 8])); k += 1
        for i in range(0, len(chains), 8): run(rr(chains[i:i + 8]))
        Bq = [[self.WF.sub((h * 4 + m) * 4, 4) for m in range(4)] for h in range(2)]
        for h in range(2):
            for m in range(4):
                P.v_cvt_pk_bf16_f32(Bq[h][m][0], acc2(h, m)[0], acc2(h, m)[1]); P.v_cvt_pk_bf16_f32(Bq[h][m][1], acc2(h, m)[2], acc2(h, m)[3])
        for m in range(2):
            for h in range(2):
                P.v_cvt_pk_bf16_f32(Bq[h][m][2], acc2(2, m)[0], acc2(2, m)[1]); P.v_cvt_pk_bf16_f32(Bq[h][m][3], acc2(2, m)[2], acc2(2, m)[3])
        XS = SCR + 16384
        wa, ra = T[0], T[1]
        P.v_lshlrev_b32(wa, 3, lane)
        P.v_add_u32(ra, 256, wa); P.v_and_b32(ra, 511, ra)
        P.s_lshl_b32(self.s_t0, self.s_w, 10); P.s_add_u32(self.s_t0, self.s_t0, XS)
        P.s_xor_b32(self.s_t1, self.s_w, 1); P.s_lshl_b32(self.s_t1, self.s_t1, 10); P.s_add_u32(self.s_t1, self.s_t1, XS)
        P.v_add_u32(wa, self.s_t0, wa); P.v_add_u32(ra, self.s_t1, ra)
        for m in range(2): P.ds_write_b64(wa, Bq[0][m][2:4], mods=f"offset:{512 * m}")
        P.wait(lgkm=0); P.s_barrier()
        for m in range(2):
            for h in range(2): P.ds_read_b64(Bq[h][2 + m][2:4], ra, mods=f"offset:{512 * m}")
        P.s_lshl_b32(self.s_t0, self.s_hg, 1); P.s_add_u32(self.s_t0, self.s_t0, self.s_ch); P.s_lshl_b32(self.s_t0, self.s_t0, 2)
        P.v_mov_b32(wa, self.s_t0)
        self.poll(self.sDBG, wa, lambda sr: P.s_cmp_ge_u32(sr, 32), "pa")
        self.stamp()
        P.s_lshl_b32(self.s_t0, self.s_hg, 5); P.s_add_u32(self.s_t0, self.s_t0, self.s_ch)
        P.s_lshl_b32(self.s_t0, self.s_t0, 2); P.s_lshl_b32(self.s_t1, self.s_rh, 1); P.s_add_u32(self.s_t0, self.s_t0, self.s_t1)
        P.s_lshl_b32(self.s_t0, self.s_t0, 10); P.s_add_u32(self.s_t0, self.s_t0, KVP_OFF)
        P.v_lshlrev_b32(wa, 4, lane); P.v_add_u32(wa, self.s_t0, wa)
        pool = [self.ACC1.sub(4 * i, 4) for i in range(20)] + [self.XV.sub(4 * i, 4) for i in range(16)]
        bufs = [[pool[a_ * 16 + rb] for rb in range(16)] for a_ in range(2)]
        for rb in range(16):
            P.s_mov_b32(self.s_t1, rb * 8192)
            for a_ in range(2):
                P.buffer_load_dwordx4(bufs[a_][rb], wa, self.sWS, self.s_t1, mods=f"offen offset:{1024 * a_} sc1")
        for step in (1, 2, 4, 8):
            for rb in range(0, 16, 2 * step):
                for a_ in range(2):
                    for r in range(4): P.v_add_f32(bufs[a_][rb][r], bufs[a_][rb][r], bufs[a_][rb + step][r])
        P.v_lshlrev_b32(ra, 4, lane)
        P.s_lshl_b32(self.s_t0, self.s_ch, 12); P.s_add_u32(self.s_t0, self.s_t0, SCR)
        P.v_add_u32(ra, self.s_t0, ra)
        P.s_lshl_b32(self.s_t1, self.s_rh, 11)
        P.v_add_u32(wa, self.s_t1, ra)
        for a_ in range(2): P.ds_write_b128(wa, bufs[a_][0], mods=f"offset:{1024 * a_}")
        P.wait(lgkm=0); P.s_barrier()
        S = [pool[1], pool[2], pool[3], pool[4]]
        for t in range(4): P.ds_read_b128(S[t], ra, mods=f"offset:{1024 * t}")
        KV0, KV1, X, YW = S
        Wt = pool[5]
        for r in range(4): P.v_mov_b32(Wt[r], 0)
        Yc = pool[6]
        for r in range(4): P.v_mov_b32(Yc[r], YW[r])
        for r in range(4): P.v_permlane32_swap_b32(Yc[r], Wt[r])
        A1 = [pool[7], pool[8]]; A2 = [pool[9], pool[10]]; A3 = [pool[11], pool[12]]
        tmp = pool[13]; zb = pool[14]
        yb = tmp[0:2]; wb = tmp[2:4]
        P.v_cvt_pk_bf16_f32(yb[0], YW[0], YW[1]); P.v_cvt_pk_bf16_f32(yb[1], YW[2], YW[3])
        P.v_cvt_pk_bf16_f32(wb[0], Wt[0], Wt[1]); P.v_cvt_pk_bf16_f32(wb[1], Wt[2], Wt[3])
        xb = zb[0:2]; wz = zb[2:4]
        P.v_cvt_pk_bf16_f32(xb[0], X[0], X[1]); P.v_cvt_pk_bf16_f32(xb[1], X[2], X[3])
        for j in range(2): P.v_mov_b32(wz[j], wb[j], mods="row_newbcast:0 row_mask:0xf bank_mask:0xf")
        for h in range(2):
            KV = (KV0, KV1)[h]; mg = M[3 + h]
            P.v_cvt_pk_bf16_f32(A1[h][0], KV[0], KV[1]); P.v_cvt_pk_bf16_f32(A1[h][1], KV[2], KV[3])
            for j in range(2):
                P.v_cndmask_b32(A1[h][2 + j], 0, yb[j], mg)
                P.v_mov_b32(A2[h][j], xb[j])
                P.v_cndmask_b32(A2[h][2 + j], 0, wb[j], mg)
                P.v_mov_b32(A3[h][j], xb[j], mods=f"row_newbcast:{4 * h} row_mask:0xf bank_mask:0xf")
                P.v_cndmask_b32(A3[h][2 + j], 0, wz[j], mg)
        oa, ol = T[2], T[3]
        P.s_lshl_b32(self.s_t0, self.s_rb, 3); P.s_lshl_b32(self.s_t1, self.s_rh, 2); P.s_add_u32(self.s_t0, self.s_t0, self.s_t1)
        P.s_lshl_b32(self.s_t0, self.s_t0, 2); P.s_lshr_b32(self.s_t1, self.s_hg, 1); P.s_add_u32(self.s_t0, self.s_t0, self.s_t1)
        P.s_mul_i32(self.s_t0, self.s_t0, 5120)
        if O_OFF: P.s_add_u32(self.s_t0, self.s_t0, O_OFF)
        P.s_mul_i32(self.s_t1, self.s_ch, 2 * 20480)
        P.s_add_u32(self.s_t2, self.s_t0, self.s_t1)
        P.s_sub_u32(self.s_t3, self.s_t0, self.s_t1)
        P.s_and_b32(self.s_t0, self.s_hg, 1)
        P.s_lshl_b32(self.s_t1, self.s_t0, 1); P.s_add_u32(self.s_t1, self.s_t1, self.s_ch); P.s_lshl_b32(self.s_t1, self.s_t1, 10)
        P.v_lshlrev_b32(oa, 4, lane); P.v_add_u32(ol, 4096 - 512, oa); P.v_add_u32(oa, self.s_t1, oa)
        P.s_lshl_b32(self.s_t1, self.s_ch, 9); P.s_lshl_b32(self.s_t0, self.s_t0, 3); P.s_add_u32(self.s_t1, self.s_t1, self.s_t0)
        P.v_add_u32(ol, self.s_t1, ol)
        P.v_mov_b32(T[4], self.sc[3]); P.v_cmp_gt_u32(VCC, 32, lane); P.v_cndmask_b32(ol, ol, T[4], VCC)
        soff = self.s_xso
        N = [[pool[15 + 0], pool[15 + 1], pool[15 + 2]], [pool[18], pool[19], pool[20]]]
        outm = pool[21]; outl = pool[22]
        for m in range(4):
            for h in range(2):
                P.v_mfma_f32_16x16x32_bf16(N[h][2], A3[h], Bq[h][m], 0)
                P.v_mfma_f32_16x16x32_bf16(N[h][0], A1[h], Bq[h][m], 0)
                P.v_mfma_f32_16x16x32_bf16(N[h][1], A2[h], Bq[h][m], 0)
            for h in range(2):
                rd = N[h][2][0]
                P.v_add_f32(rd, self.sc[1], rd); P.v_rcp_f32(rd, rd)
            for h in range(2):
                rd = N[h][2][0]
                for r in range(4): P.v_mul_f32(N[h][0][r], N[h][0][r], rd)
                for r in range(4): P.v_mul_f32(N[h][1][r], N[h][1][r], rd)
                P.v_cvt_pk_bf16_f32(outm[2 * h], N[h][0][0], N[h][0][1]); P.v_cvt_pk_bf16_f32(outm[2 * h + 1], N[h][0][2], N[h][0][3])
            for r in range(4): P.v_cndmask_b32(N[0][1][r], N[0][1][r], N[1][1][r], M[2])
            P.v_cvt_pk_bf16_f32(outl[0], N[0][1][0], N[0][1][1]); P.v_cvt_pk_bf16_f32(outl[1], N[0][1][2], N[0][1][3])
            P.s_add_u32(soff, self.s_t2 if m < 2 else self.s_t3, m * 20480)
            P.buffer_store_dwordx4(outm, oa, self.sWS, soff, mods="offen")
            P.buffer_store_dwordx2(outl[0:2], ol, self.sWS, soff, mods="offen")

    def b_addr_P(self):
        P = self.P
        P.s_lshl_b32(self.s_t0, self.s_rh, 1)
        P.s_add_u32(self.s_t2, self.s_t0, self.s_ch)
        P.s_xor_b32(self.s_t3, self.s_t2, 1)
    def b_epi1(self):
        P = self.P; T = self.T; M = self.msk; lane = self.lane; acc1 = self.acc1
        self.b_addr_P()
        idx, g, ka, va_, tmp = T[0], T[1], T[2], T[3], T[4]
        P.v_and_b32(idx, 15, lane); P.v_lshrrev_b32(g, 4, lane)
        kreg = [T[5], T[6]]
        for hi in range(2):
            sP = self.s_t3 if hi else self.s_t2
            P.s_lshl_b32(self.s_t0, sP, 4); P.s_mul_i32(self.s_t1, self.s_ch, 4 * 72); P.s_add_u32(self.s_t0, self.s_t0, self.s_t1)
            P.s_add_u32(self.s_t0, self.s_t0, 8)
            P.v_add_u32(tmp, self.s_t0, idx); P.v_mul_u32_u24(tmp, 40, tmp)
            P.v_lshlrev_b32(kreg[hi], 3, g); P.v_add_u32(kreg[hi], kreg[hi], tmp); P.v_add_u32(kreg[hi], KBASE, kreg[hi])
        for t in range(2):
            for m in range(4):
                A = acc1(t, m)
                P.v_cvt_pk_bf16_f32(A[0], A[0], A[1]); P.v_cvt_pk_bf16_f32(A[1], A[2], A[3])
                P.ds_write_b64(kreg[m >> 1], A[0:2], mods=f"offset:{(t * 2 + (m & 1)) * 2880}")
        P.s_lshl_b32(self.s_t1, self.s_ch, 1)
        P.v_xor_b32(tmp, self.s_t1, g); P.v_mul_u32_u24(tmp, 2 * 2880, tmp)
        P.s_lshl_b32(self.s_t0, self.s_t2, 4); P.s_add_u32(self.s_t0, self.s_t0, 8)
        P.v_add_u32(ka, self.s_t0, idx); P.v_mul_u32_u24(ka, 40, ka); P.v_add_u32(ka, ka, tmp); P.v_add_u32(ka, KBASE + 32, ka)
        for m in range(2):
            A = acc1(4, m)
            P.v_cvt_pk_bf16_f32(A[0], A[0], A[1]); P.v_cvt_pk_bf16_f32(A[1], A[2], A[3])
            P.ds_write_b64(ka, A[0:2], mods=f"offset:{m * 2880}")
        vreg = [T[5], T[6]]
        P.v_lshrrev_b32(tmp, 2, idx); P.v_mul_u32_u24(tmp, 784, tmp)
        P.v_and_b32(va_, 3, idx); P.v_mul_u32_u24(va_, 192, va_); P.v_add_u32(va_, va_, tmp)
        P.v_lshlrev_b32(tmp, 3, g); P.v_add_u32(va_, va_, tmp)
        for hi in range(2):
            sP = self.s_t3 if hi else self.s_t2
            P.s_lshl_b32(self.s_t0, sP, 5); P.s_mul_i32(self.s_t1, self.s_ch, 4 * 3920); P.s_add_u32(self.s_t0, self.s_t0, self.s_t1)
            P.s_add_u32(self.s_t0, self.s_t0, VBASE + 16)
            P.v_add_u32(vreg[hi], self.s_t0, va_)
        for t in range(2):
            for m in range(4):
                A = acc1(2 + t, m)
                P.v_cvt_pk_bf16_f32(A[0], A[0], A[1]); P.v_cvt_pk_bf16_f32(A[1], A[2], A[3])
                P.ds_write_b64(vreg[m >> 1], A[0:2], mods=f"offset:{(t * 2 + (m & 1)) * 3920}")
        P.v_lshrrev_b32(tmp, 2, idx); P.s_lshl_b32(self.s_t1, self.s_ch, 1); P.v_xor_b32(tmp, self.s_t1, tmp); P.v_mul_u32_u24(tmp, 2 * 3920, tmp)
        P.v_and_b32(va_, 3, idx); P.v_mul_u32_u24(va_, 192, va_); P.v_add_u32(va_, va_, tmp)
        P.v_lshlrev_b32(tmp, 3, g); P.v_add_u32(va_, va_, tmp)
        P.s_lshl_b32(self.s_t0, self.s_t2, 5); P.s_add_u32(self.s_t0, self.s_t0, VBASE + 16 + 4 * 784)
        P.v_add_u32(va_, self.s_t0, va_)
        for m in range(2):
            A = acc1(4, 2 + m)
            P.v_cvt_pk_bf16_f32(A[0], A[0], A[1]); P.v_cvt_pk_bf16_f32(A[1], A[2], A[3])
            P.ds_write_b64(va_, A[0:2], mods=f"offset:{m * 3920}")
        P.wait(lgkm=0); P.s_barrier()
        la = [T[5], T[6]]; ga = [T[7], T[8]]
        self.halo_addr(la, tail=True)
        P.s_lshl_b32(self.s_t0, self.s_rb, 3); P.s_add_u32(self.s_t0, self.s_t0, self.s_hg); P.s_mul_i32(self.s_t0, self.s_t0, 5120)
        P.s_add_u32(self.s_t0, self.s_t0, HALO_OFF)
        P.v_lshlrev_b32(ga[0], 4, self.tid()); P.v_add_u32(ga[0], self.s_t0, ga[0])
        P.v_lshlrev_b32(ga[1], 4, lane); P.v_add_u32(ga[1], self.s_t0, ga[1]); P.v_add_u32(ga[1], 4096, ga[1])
        P.s_cmp_eq_u32(self.s_w, 0); P.s_cselect_b32(self.s_t1, 0, self.sc[3]); P.v_or_b32(ga[1], self.s_t1, ga[1])
        d0, d1 = acc1(0, 0), acc1(0, 1)
        P.ds_read_b128(d0, la[0]); P.ds_read_b128(d1, la[1])
        P.buffer_store_dwordx4(d0, ga[0], self.sWS, 0, mods="offen sc1")
        P.buffer_store_dwordx4(d1, ga[1], self.sWS, 0, mods="offen sc1")
        P.wait(vm=0); P.s_barrier()
        P.s_lshl_b32(self.s_t0, self.s_hg, 2); P.s_add_u32(self.s_t0, self.s_t0, 64)
        P.v_mov_b32(ga[0], self.s_t0); P.v_mov_b32(ga[1], self.sc[3])
        P.v_cmp_eq_u32(VCC, 0, self.tid()); P.v_cndmask_b32(ga[0], ga[1], ga[0], VCC)
        P.s_lshl_b32(self.s_t0, 1, self.s_rb); P.v_mov_b32(ga[1], self.s_t0)
        P.buffer_atomic_or(ga[1], ga[0], self.sDBG, 0, mods="offen sc1")
    def tid(self):
        return self.tidr
    def halo_addr(self, la, tail):
        P = self.P; T = self.T
        u, q, rme, t3 = T[0], T[1], T[2], T[3]
        for k in range(2):
            if k == 0: P.v_mov_b32(u, self.tid())
            else: P.v_add_u32(u, 256, self.lane)
            P.v_cmp_lt_u32(VCC, 159, u)
            P.v_subrev_u32(t3, 160, u)
            P.v_cndmask_b32(u, u, t3, VCC)
            P.v_mul_u32_u24(q, 205, u); P.v_lshrrev_b32(q, 12, q)
            P.v_mul_u32_u24(rme, 20, q); P.v_sub_u32(rme, u, rme)
            P.v_mul_u32_u24(t3, 2880, q); P.v_lshlrev_b32(u, 4, rme); P.v_add_u32(t3, t3, u)
            P.v_add_u32(t3, KBASE + (2560 if tail else 0), t3)
            P.v_mul_u32_u24(q, 3920, q)
            P.v_lshrrev_b32(u, 2, rme); P.v_mul_u32_u24(u, 784, u); P.v_add_u32(q, q, u)
            P.v_and_b32(u, 3, rme); P.v_mul_u32_u24(u, 192, u); P.v_add_u32(q, q, u)
            P.v_add_u32(q, VBASE + (128 if tail else 0), q)
            P.v_cndmask_b32(la[k], t3, q, VCC)

    def b_epi2(self):
        P = self.P; T = self.T; M = self.msk; lane = self.lane; acc2 = self.acc2
        self.b_addr_P()
        idx, g, tmp, qa = T[0], T[1], T[2], T[3]
        P.v_and_b32(idx, 15, lane); P.v_lshrrev_b32(g, 4, lane)
        qreg = [T[5], T[6]]
        for hi in range(2):
            sP = self.s_t3 if hi else self.s_t2
            P.s_lshl_b32(self.s_t0, sP, 4); P.s_lshl_b32(self.s_t1, self.s_ch, 8); P.s_add_u32(self.s_t0, self.s_t0, self.s_t1)
            P.v_add_u32(tmp, self.s_t0, idx); P.v_mul_u32_u24(tmp, 40, tmp)
            P.v_lshlrev_b32(qreg[hi], 3, g); P.v_add_u32(qreg[hi], qreg[hi], tmp)
            if QBASE: P.v_add_u32(qreg[hi], QBASE, qreg[hi])
        for t in range(2):
            for m in range(4):
                A = acc2(t, m)
                P.v_cvt_pk_bf16_f32(A[0], A[0], A[1]); P.v_cvt_pk_bf16_f32(A[1], A[2], A[3])
                P.ds_write_b64(qreg[m >> 1], A[0:2], mods=f"offset:{(t * 2 + (m & 1)) * 2560}")
        P.s_lshl_b32(self.s_t1, self.s_ch, 1)
        P.v_xor_b32(tmp, self.s_t1, g); P.v_mul_u32_u24(tmp, 2 * 2560, tmp)
        P.s_lshl_b32(self.s_t0, self.s_t2, 4)
        P.v_add_u32(qa, self.s_t0, idx); P.v_mul_u32_u24(qa, 40, qa); P.v_add_u32(qa, qa, tmp); P.v_add_u32(qa, QBASE + 32, qa)
        for m in range(2):
            A = acc2(2, m)
            P.v_cvt_pk_bf16_f32(A[0], A[0], A[1]); P.v_cvt_pk_bf16_f32(A[1], A[2], A[3])
            P.ds_write_b64(qa, A[0:2], mods=f"offset:{m * 2560}")
        la = [T[5], T[6]]; ga = [T[7], T[8]]
        self.halo_addr(la, tail=False)
        Lskip = self.lbl("noh")
        d0, d1 = self.acc1(0, 0), self.acc1(0, 1)
        P.s_lshl_b32(self.s_t0, self.s_hg, 2); P.s_add_u32(self.s_t0, self.s_t0, 64)
        P.v_mov_b32(ga[0], self.s_t0)
        P.s_sub_u32(self.s_t0, self.s_rb, 1); P.s_lshl_b32(self.s_t1, 1, self.s_t0)
        P.s_cmp_eq_u32(self.s_rb, 0); P.s_cselect_b32(self.s_xso, 0, self.s_t1)
        def cond(sr):
            P.s_and_b32(sr, sr, self.s_xso); P.s_cmp_eq_u32(sr, self.s_xso)
        self.poll(self.sDBG, ga[0], cond, "pb")
        self.stamp()
        P.s_sub_u32(self.s_t0, self.s_rb, 1); P.s_lshl_b32(self.s_t0, self.s_t0, 3); P.s_add_u32(self.s_t0, self.s_t0, self.s_hg)
        P.s_mul_i32(self.s_t0, self.s_t0, 5120); P.s_add_u32(self.s_t0, self.s_t0, HALO_OFF)
        P.s_cmp_eq_u32(self.s_rb, 0); P.s_cselect_b32(self.s_t0, self.sc[3], self.s_t0)
        P.v_lshlrev_b32(ga[0], 4, self.tid()); P.v_add_u32(ga[0], self.s_t0, ga[0])
        P.v_lshlrev_b32(ga[1], 4, lane); P.v_add_u32(ga[1], self.s_t0, ga[1]); P.v_add_u32(ga[1], 4096, ga[1])
        P.buffer_load_dwordx4(d0, ga[0], self.sWS, 0, mods="offen sc1")
        P.buffer_load_dwordx4(d1, ga[1], self.sWS, 0, mods="offen sc1")
        P.s_cmp_eq_u32(self.s_w, 0); P.s_cselect_b32(self.s_t1, 1, 0)
        P.v_mov_b32(tmp, self.s_t1); P.v_cmp_eq_u32(VCC, 1, tmp)
        P.v_lshlrev_b32(tmp, 4, lane); P.v_add_u32(tmp, 24576, tmp)
        P.v_cndmask_b32(la[1], tmp, la[1], VCC)
        P.ds_write_b128(la[0], d0); P.ds_write_b128(la[1], d1)
        P.wait(lgkm=0); P.s_barrier()
        qa, ka, va_ = T[0], T[1], T[2]
        P.s_lshl_b32(self.s_t0, self.s_ch, 2); P.s_add_u32(self.s_t0, self.s_t0, self.s_rh)
        P.v_mul_u32_u24(qa, 40, lane)
        P.s_mul_i32(self.s_t1, self.s_t0, 2880); P.s_add_u32(self.s_t1, self.s_t1, KBASE); P.v_add_u32(ka, self.s_t1, qa)
        P.s_mul_i32(self.s_t1, self.s_t0, 2560); P.s_add_u32(self.s_t1, self.s_t1, QBASE); P.v_add_u32(qa, self.s_t1, qa)
        P.v_and_b32(va_, 3, lane); P.v_mul_u32_u24(va_, 192, va_)
        P.v_lshrrev_b32(T[3], 2, lane); P.v_lshlrev_b32(T[3], 3, T[3]); P.v_add_u32(va_, va_, T[3])
        P.s_mul_i32(self.s_t1, self.s_t0, 3920); P.s_add_u32(self.s_t1, self.s_t1, VBASE); P.v_add_u32(va_, self.s_t1, va_)
        B0 = self.XV.sub(0, 4); B1 = self.XV.sub(4, 4)
        P.s_cmp_eq_u32(self.s_rb, 0); P.s_cselect_b32(self.s_t0, f32bits(-1e30), 0)
        P.v_mov_b32(T[3], self.s_t0)
        P.v_cmp_gt_u32(VCC, 8, lane)
        for r in range(4): P.v_cndmask_b32(B0[r], 0, T[3], VCC)
        P.v_cmp_gt_u32(VCC, 4, lane)
        for r in range(4): P.v_cndmask_b32(B1[r], 0, T[3], VCC)
        cs = 20 ** -0.5 * LOG2E
        P.s_mov_b32(self.sc[4], f32bits(cs)); P.s_mov_b32(self.sc[5], f32bits(-cs))
        pool = self.ACC1
        Qf = [pool.sub(2 * d, 2) for d in range(5)]
        Kf = [[pool.sub(10 + 10 * G + 2 * d, 2) for d in range(5)] for G in range(3)]
        Vf = [[pool.sub(40 + 10 * G + 2 * e, 2) for e in range(5)] for G in range(3)]
        S = [self.XV.sub(8 + 4 * G, 4) for G in range(3)]
        O = [[self.XV.sub(20 + 20 * it + 4 * e, 4) for e in range(5)] for it in range(2)]
        Pp = [self.WF.sub(2 * G, 2) for G in range(3)]
        E = [self.WF.sub(8 + k, 1) for k in range(8)]
        Z = [self.WF.sub(16 + k, 1) for k in range(8)]
        mx, rs = self.WF[24], self.WF[25]
        for it in range(2):
            for d in range(5): P.ds_read_b64(Qf[d], qa, mods=f"offset:{it * 5120 + 8 * d}")
            for d in range(5):
                for G in range(3): P.ds_read_b64(Kf[G][d], ka, mods=f"offset:{it * 5760 + 160 * G + 8 * d}")
            for G in range(3):
                for e in range(5): P.ds_read_b64(Vf[G][e], va_, mods=f"offset:{it * 7840 + 784 * e + 8 * G}")
            for d in range(5):
                for G in range(3):
                    C = (B0, B1, 0)[G] if d == 0 else S[G]
                    P.v_mfma_f32_4x4x4_16b_bf16(S[G], Kf[G][d], Qf[d], C)
            L = [S[2][0]]
            for x in range(1, 4):
                P.v_cndmask_b32(E[x], S[0][x], S[2][x], M[4 + x]); L.append(E[x])
            L += [S[1][r] for r in range(4)]
            P.v_max3_f32(mx, L[0], L[1], L[2]); P.v_max3_f32(mx, mx, L[3], L[4]); P.v_max3_f32(mx, mx, L[5], L[6]); P.v_max_f32(mx, mx, L[7])
            P.v_mul_f32(mx, self.sc[5], mx)
            for k in range(8): P.v_fma_f32(E[k], L[k], self.sc[4], mx)
            for k in range(8): P.v_exp_f32(E[k], E[k])
            P.v_add_f32(Z[0], E[0], E[1]); P.v_add_f32(Z[1], E[2], E[3]); P.v_add_f32(Z[2], E[4], E[5]); P.v_add_f32(Z[3], E[6], E[7])
            P.v_add_f32(Z[0], Z[0], Z[1]); P.v_add_f32(Z[2], Z[2], Z[3]); P.v_add_f32(rs, Z[0], Z[2])
            P.v_rcp_f32(rs, rs)
            for k in range(8): P.v_mul_f32(E[k], E[k], rs)
            for x in range(1, 4):
                P.v_cndmask_b32(Z[x], 0, E[x], M[4 + x])
                P.v_cndmask_b32(Z[4 + x], E[x], 0, M[4 + x])
            P.v_cvt_pk_bf16_f32(Pp[2][0], E[0], Z[1]); P.v_cvt_pk_bf16_f32(Pp[2][1], Z[2], Z[3])
            P.v_cvt_pk_bf16_f32(Pp[0][0], 0, Z[5]); P.v_cvt_pk_bf16_f32(Pp[0][1], Z[6], Z[7])
            P.v_cvt_pk_bf16_f32(Pp[1][0], E[4], E[5]); P.v_cvt_pk_bf16_f32(Pp[1][1], E[6], E[7])
            for G in range(3):
                for e in range(5):
                    P.v_mfma_f32_4x4x4_16b_bf16(O[it][e], Vf[G][e], Pp[G], 0 if G == 0 else O[it][e])
        OB = O_OFF + 128 * 20480
        oa, ol = T[3], T[4]
        P.s_lshl_b32(self.s_t0, self.s_rb, 3); P.s_add_u32(self.s_t0, self.s_t0, self.s_rh)
        P.s_lshl_b32(self.s_t0, self.s_t0, 2); P.s_lshr_b32(self.s_t1, self.s_hg, 1); P.s_add_u32(self.s_t0, self.s_t0, self.s_t1)
        P.s_mul_i32(self.s_t0, self.s_t0, 5120)
        P.s_add_u32(self.s_t0, self.s_t0, OB)
        P.v_lshrrev_b32(T[5], 4, lane); P.s_mov_b32(self.s_t1, 2 * 20480); P.v_mul_lo_u32(T[5], T[5], self.s_t1)
        P.v_add_u32(T[5], self.s_t0, T[5])
        P.v_and_b32(T[6], 15, lane)
        P.v_lshlrev_b32(T[6], 4, T[6]); P.v_add_u32(T[5], T[5], T[6])
        P.s_and_b32(self.s_t0, self.s_hg, 1)
        P.s_lshl_b32(self.s_t1, self.s_t0, 1); P.s_add_u32(self.s_t1, self.s_t1, self.s_ch); P.s_lshl_b32(self.s_t1, self.s_t1, 10)
        P.v_add_u32(oa, self.s_t1, T[5])
        P.s_lshl_b32(self.s_t1, self.s_ch, 9); P.s_lshl_b32(self.s_t0, self.s_t0, 3); P.s_add_u32(self.s_t1, self.s_t1, self.s_t0)
        P.s_add_u32(self.s_t1, self.s_t1, 4096)
        P.v_add_u32(ol, self.s_t1, T[5])
        outs = [pool.sub(4 * e, 4) for e in range(5)]
        for e in range(4):
            for it in range(2):
                P.v_cvt_pk_bf16_f32(outs[e][2 * it], O[it][e][0], O[it][e][1]); P.v_cvt_pk_bf16_f32(outs[e][2 * it + 1], O[it][e][2], O[it][e][3])
            P.buffer_store_dwordx4(outs[e], oa, self.sWS, 0, mods=f"offen offset:{256 * e}")
        for it in range(2):
            P.v_cvt_pk_bf16_f32(outs[4][2 * it], O[it][4][0], O[it][4][1]); P.v_cvt_pk_bf16_f32(outs[4][2 * it + 1], O[it][4][2], O[it][4][3])
            P.buffer_store_dwordx2(outs[4][2 * it:2 * it + 2], ol, self.sWS, 0, mods=f"offen offset:{256 * it}")


    def wop_loads(self):
        P = self.P; lane = self.lane
        D = [self.ACC2.sub(8 * i, 8) for i in range(2)]
        va_, vt = self.ACC2[16], self.ACC2[17]
        vl = [self.ACC2[18], self.ACC2[19]]
        self.wop_D = D
        sA = self.kA; sB = self.kB
        S = [s(98), s(99), s(100), s(101)]
        th = []
        def pre():
            P.v_and_b32(va_, 15, lane); P.v_lshrrev_b32(vt, 2, va_); P.v_mul_u32_u24(vt, 40, vt)
            P.v_and_b32(va_, 3, lane); P.v_lshlrev_b32(va_, 1, va_); P.v_add_u32(va_, va_, vt)
            P.v_lshrrev_b32(vt, 4, lane)
            P.v_mul_u32_u24(vl[0], 4 * 1280, vt); P.v_add_u32(vl[0], vl[0], va_)
            P.v_mul_u32_u24(vl[1], 20 * 1280, vt); P.v_add_u32(vl[1], vl[1], va_)
        th.append(pre)
        for i in range(2):
            def f(i=i):
                t0, t1, t2, t3 = self.s_t0, self.s_t1, self.s_t2, self.s_t3
                P.s_lshr_b32(t0, self.s_id, 4); P.s_lshl_b32(t0, t0, 2); P.s_add_u32(t0, t0, self.s_w)
                if i: P.s_add_u32(t0, t0, 64)
                P.s_mul_i32(t1, t0, 205); P.s_lshr_b32(t1, t1, 10)
                P.s_mul_i32(t2, t1, 5); P.s_sub_u32(t2, t0, t2)
                P.s_and_b32(t3, self.s_id, 15); P.s_mul_i32(t3, t3, 100); P.s_add_u32(t3, t3, t0); P.s_lshl_b32(t3, t3, 10)
                P.s_add_u32(t3, t3, WOP_OFF)
                P.s_cmp_lt_u32(t0, 100); P.s_cselect_b32(S[2 + i], t3, self.sc[3])
                P.s_mul_i32(t0, t1, 205); P.s_lshr_b32(t0, t0, 10)
                P.s_mul_i32(t3, t0, 5); P.s_sub_u32(t3, t1, t3)
                P.s_and_b32(t1, self.s_id, 7); P.s_mul_i32(t1, t1, 160); P.s_lshl_b32(t2, t2, 3); P.s_add_u32(t1, t1, t2)
                P.s_mul_i32(t0, t0, 160)
                P.s_mul_i32(t2, t3, 40)
                P.s_cmp_eq_u32(t3, 4)
                P.s_cselect_b32(t2, 16, t2)
                P.s_cselect_b32(t3, 80, 20)
                P.s_cselect_b64(VCC, -1, 0)
                P.s_add_u32(t0, t0, t2); P.s_mul_i32(t0, t0, 1280); P.s_add_u32(S[0], t0, t1)
                P.s_mul_i32(t3, t3, 1280)
                P.s_add_u32(S[1], S[0], t3)
                P.v_cndmask_b32(va_, vl[0], vl[1], VCC)
                for j in range(8):
                    P.buffer_load_ushort(D[i][j], va_, self.sWO, S[j >> 2], mods=f"offen offset:{(j & 3) * 1280}")
            th.append(f)
        self.wop_S = S
        return th
    def wop_store(self):
        P = self.P; D = self.wop_D; S = self.wop_S; vt = self.ACC2[17]
        th = []
        for i in range(2):
            def f(i=i):
                for q in range(4): P.v_lshl_or_b32(D[i][q], D[i][2 * q + 1], 16, D[i][2 * q])
                P.v_lshlrev_b32(vt, 4, self.lane)
                P.buffer_store_dwordx4(D[i][0:4], vt, self.sWS, S[2 + i], mods="offen")
            th.append(f)
        return th

    def gen(self):
        P = self.P
        self.tidr = v(191)
        self.prologue()
        P.s_cmp_eq_u32(self.s_br, 0)
        P.s_cbranch_scc0("K1_B")
        save = (P.vm_seq, P.lgkm_seq, P.vm_done, P.lgkm_done, dict(P.pend), P.smem_out, dict(self.vm_ticket), self.nst)
        self.stamp()
        self.gate_loads()
        self.pass1(0, extra={(5, 0): self.gate_compute(), (6, 0): self.wop_loads(), (8, 1): self.wop_store()})
        self.stamp()
        self.a_epi1()
        self.stamp()
        self.pass2(0)
        self.stamp()
        self.a_epi2()
        self.stamp()
        self.dump_stamps()
        P.s_branch("K1_END")
        P.label("K1_B")
        (P.vm_seq, P.lgkm_seq, P.vm_done, P.lgkm_done, P.pend, P.smem_out, self.vm_ticket, self.nst) = save
        self.stamp()
        self.pass1(1, extra={(6, 0): self.wop_loads(), (8, 1): self.wop_store()})
        self.stamp()
        self.b_epi1()
        self.stamp()
        self.pass2(1)
        self.stamp()
        self.b_epi2()
        self.stamp()
        self.dump_stamps()
        P.label("K1_END")
        P.s_endpgm()
        return P

def gen_k2(opts):
    P = Prog()
    ACC = v(0, 80)
    def acc(m, nt): return ACC.sub((m * 5 + nt) * 4, 4)
    def wof(ks, nt): return a((ks * 5 + nt) * 4, 4)
    def of(ks, m):
        i = ks * 4 + m
        return a(200 + 4 * i, 4) if i < 14 else v(80 + 4 * (i - 14), 4)
    lane, t0, t1, t2, vo = v(184), v(185), v(186), v(187), v(188)
    G = [v(190 + i) for i in range(4)]
    sWS = s(8, 4); sOUT = s(12, 4); k0 = s(16, 4); k1 = s(20, 2)
    s_id = s(2)
    s_w, s_xcd, s_j, s_row, s_col, s_br, s_half, st0, st1, st2, s_ob, s_wb = [s(24 + i) for i in range(12)]
    s_om = [s(40 + i) for i in range(4)]
    P.s_cmp_ge_u32(s_id, 256); P.s_cbranch_scc1("K2_END")
    P.s_load_dwordx2(k1, s(0, 2), 72)
    P.s_load_dwordx2(k0[0:2], s(0, 2), 56)
    P.v_and_b32(lane, 63, v(0)); P.v_lshrrev_b32(t0, 6, v(0)); P.v_readfirstlane_b32(s_w, t0)
    P.s_and_b32(s_xcd, s_id, 7); P.s_lshr_b32(s_j, s_id, 3)
    P.s_lshr_b32(st0, s_xcd, 1); P.s_lshl_b32(st0, st0, 3); P.s_and_b32(st1, s_j, 7); P.s_add_u32(s_row, st0, st1)
    P.s_and_b32(st0, s_xcd, 1); P.s_lshl_b32(st0, st0, 2); P.s_lshr_b32(st1, s_j, 3); P.s_add_u32(s_col, st0, st1)
    P.s_lshr_b32(s_br, s_w, 1); P.s_and_b32(s_half, s_w, 1)
    P.v_lshlrev_b32(vo, 4, lane)
    P.s_lshl_b32(st0, s_br, 7); P.s_lshl_b32(st1, s_row, 2); P.s_add_u32(st0, st0, st1); P.s_lshl_b32(st0, st0, 2)
    P.s_lshl_b32(st1, s_half, 1); P.s_add_u32(st0, st0, st1); P.s_mul_i32(s_ob, st0, 5120)
    if O_OFF: P.s_add_u32(s_ob, s_ob, O_OFF)
    for m in range(4):
        P.s_xor_b32(st0, s_w, m); P.s_mul_i32(st0, st0, 20480); P.s_add_u32(s_om[m], s_ob, st0)
    P.s_lshl_b32(st0, s_br, 3); P.s_add_u32(st0, st0, s_col); P.s_mul_i32(st0, st0, 100); P.s_mul_i32(st1, s_half, 50)
    P.s_add_u32(st0, st0, st1); P.s_lshl_b32(st0, st0, 10); P.s_add_u32(s_wb, st0, WOP_OFF)
    P.wait(lgkm=0)
    P.s_mov_b32(sWS[0], k1[0]); P.s_mov_b32(sWS[1], k1[1]); P.s_mov_b32(sWS[2], WS_BYTES); P.s_mov_b32(sWS[3], 0x20000)
    P.s_mov_b32(sOUT[0], k0[0]); P.s_mov_b32(sOUT[1], k0[1]); P.s_mov_b32(sOUT[2], 2048 * 1280); P.s_mov_b32(sOUT[3], 0x20000)
    vq = [vo, v(194), v(195)]
    P.v_add_u32(vq[1], 4096, vo); P.v_add_u32(vq[2], 8192, vo)
    for ks in range(10):
        for nt in range(5):
            off = (ks * 5 + nt) * 1024
            if off % 4096 == 0 and off: P.s_add_u32(s_wb, s_wb, 4096)
            P.buffer_load_dwordx4(wof(ks, nt), vo, sWS, s_wb, mods=f"offen offset:{off % 4096}")
        for m in range(4):
            P.buffer_load_dwordx4(of(ks, m), vq[ks // 4], sWS, s_om[m], mods=f"offen offset:{(ks % 4) * 1024}")
        if ks == 0:
            P.v_and_b32(t0, 15, lane); P.v_lshlrev_b32(t0, 3, t0)
            for m in range(4):
                P.s_xor_b32(st0, s_w, m); P.s_lshr_b32(st1, st0, 1); P.s_lshl_b32(st1, st1, 5); P.s_and_b32(st0, st0, 1); P.s_add_u32(st0, st0, st1)
                P.s_lshl_b32(st1, s_row, 6); P.s_add_u32(st0, st0, st1); P.s_lshl_b32(st0, st0, 2); P.s_add_u32(st0, st0, G_OFF)
                P.buffer_load_dword(G[m], t0, sWS, st0, mods="offen")
    for ks in range(10):
        for m in range(4):
            for nt in range(5):
                P.v_mfma_f32_16x16x32_bf16(acc(m, nt), wof(ks, nt), of(ks, m), 0 if ks == 0 else acc(m, nt))
    P.s_cmp_eq_u32(s_br, 0); P.s_cselect_b32(st0, f32bits(1.0), f32bits(-1.0)); P.s_cselect_b32(st1, 0, f32bits(1.0))
    P.v_mov_b32(t0, st1)
    for m in range(4): P.v_fma_f32(G[m], G[m], st0, t0)
    for m in range(1, 4):
        for nt in range(5):
            for r in range(4): P.v_mul_f32(acc(m, nt)[r], acc(m, nt)[r], G[m])
    for m in range(1, 4):
        P.s_xor_b32(st0, s_w, m); P.s_mul_i32(st0, st0, 3 * 5120); P.s_add_u32(st0, st0, (m - 1) * 5120)
        P.v_add_u32(t1, st0, vo)
        for nt in range(5):
            off = nt * 1024
            if nt == 4: P.v_add_u32(t1, 4096, t1); off = 0
            P.ds_write_b128(t1, acc(m, nt), mods=f"offset:{off}")
    for nt in range(5):
        for r in range(4): P.v_mul_f32(acc(0, nt)[r], acc(0, nt)[r], G[0])
    P.wait(lgkm=0); P.s_barrier()
    P.s_mul_i32(st0, s_w, 3 * 5120); P.v_add_u32(t1, st0, vo)
    for m in range(1, 4):
        for nt in range(5):
            P.ds_read_b128(acc(m, nt), t1, mods=f"offset:{(m - 1) * 5120 + nt * 1024}")
    for nt in range(5):
        for r in range(4):
            P.v_add_f32(acc(1, nt)[r], acc(1, nt)[r], acc(2, nt)[r])
            P.v_add_f32(acc(0, nt)[r], acc(0, nt)[r], acc(3, nt)[r])
        for r in range(4): P.v_add_f32(acc(0, nt)[r], acc(0, nt)[r], acc(1, nt)[r])
    O = v(80, 12)
    for nt in range(5):
        P.v_cvt_pk_bf16_f32(O[2 * nt], acc(0, nt)[0], acc(0, nt)[1]); P.v_cvt_pk_bf16_f32(O[2 * nt + 1], acc(0, nt)[2], acc(0, nt)[3])
    P.s_lshl_b32(st0, s_row, 6); P.s_lshl_b32(st1, s_br, 5); P.s_add_u32(st0, st0, st1); P.s_add_u32(st0, st0, s_half)
    P.s_mul_i32(st0, st0, 1280); P.s_mul_i32(st1, s_col, 160); P.s_add_u32(st0, st0, st1)
    P.v_and_b32(t0, 15, lane); P.v_mul_u32_u24(t0, 2560, t0)
    P.v_lshrrev_b32(t1, 4, lane); P.v_mul_u32_u24(t1, 40, t1); P.v_add_u32(t0, t0, t1)
    P.buffer_store_dwordx4(O[0:4], t0, sOUT, st0, mods="offen")
    P.buffer_store_dwordx4(O[4:8], t0, sOUT, st0, mods="offen offset:16")
    P.buffer_store_dwordx2(O[8:10], t0, sOUT, st0, mods="offen offset:32")
    P.label("K2_END")
    P.s_endpgm()
    return P

def build(path, opts=None, only_k1=False):
    opts = opts or {}
    k1 = K1(opts); P1 = k1.gen(); b1 = P1.finalize()
    P2 = gen_k2(opts); b2 = P2.finalize()
    n1 = NAME + "_kernel"; n2 = NAME + "_k2_kernel"
    L = [f"; @launch kernel={n1} grid=(256,1,1) block=(256,1,1) lds={K1_LDS}"]
    if not only_k1: L.append(f"; @launch kernel={n2} grid=(256,1,1) block=(256,1,1) lds=61440")
    txt = header(L)
    txt += '.amdgcn_target "amdgcn-amd-amdhsa--gfx950"\n.text\n'
    txt += f".globl {n1}\n.p2align 8\n.type {n1},@function\n{n1}:\n" + b1
    if not only_k1: txt += f".globl {n2}\n.p2align 8\n.type {n2},@function\n{n2}:\n" + b2
    txt += '.section .rodata,"a"\n.p2align 6\n' + kernel_desc(n1, 512, 102, 256)
    if not only_k1: txt += ".p2align 6\n" + kernel_desc(n2, 512, 102, 256)
    open(path, "w").write(txt)
    print("nops", P1.nops_inserted, P2.nops_inserted, "lines", txt.count("\n"), "bytes", len(txt))

if __name__ == "__main__":
    build("g2.s")
    build("g2t.s", dict(stamps=True))
```
